```python
import torch

def _softmax(x, axis=-1):
    return torch.softmax(x, dim=axis)
def _gelu(x):
    return torch.nn.functional.gelu(x, approximate="tanh")
def _silu(x):
    return torch.nn.functional.silu(x)
def _sigmoid(x):
    return torch.sigmoid(x)
def _layernorm(x, axis=-1, eps=1e-5):
    m = x.mean(dim=axis, keepdim=True)
    v = x.var(dim=axis, keepdim=True, unbiased=False)
    return (x - m) / torch.sqrt(v + eps)
def _scatter_add(tgt, idx, src, axis=0):
    return tgt.clone().index_add_(axis, idx, src)
def _segment_sum(src, seg, n):
    out = torch.zeros((n,) + src.shape[1:], dtype=src.dtype)
    return out.index_add_(0, seg, src)
def _pad(x, pw):
    flat = tuple(v for pair in reversed(pw) for v in pair)
    return torch.nn.functional.pad(x, flat)

kernel_name = 'gated_mix__softmax_full_mha__linear_attn_block__prompt'

def setup_inputs():

    _w = (lambda a: (lambda t: t.to(torch.bfloat16) if t.is_floating_point() else t)(torch.as_tensor(a)))
    def _A_setup():
        B, S, D = 1, 2048, 512
        return {
            "x": _w((lambda *s: torch.randn(*s, dtype=torch.bfloat16) * 0.05)(B, S, D)),
            "wqkv": _w((lambda *s: torch.randn(*s, dtype=torch.bfloat16) * 0.8)(D, 3 * D)),
            "wo": _w((lambda *s: torch.randn(*s, dtype=torch.bfloat16) * 0.05)(D, D)),
        }
    _A_in = _A_setup()

    def _B_setup():
        B, S, D = 1, 2048, 512
        return {
            "x": _w((lambda *s: torch.randn(*s, dtype=torch.bfloat16) * 0.05)(B, S, D)),
            "wqkv": _w((lambda *s: torch.randn(*s, dtype=torch.bfloat16) * 0.8)(D, 3 * D)),
            "wo": _w((lambda *s: torch.randn(*s, dtype=torch.bfloat16) * 0.2)(D, D)),
        }
    _B_in = _B_setup()

    return {
        "A_x": _A_in["x"],
        "A_wqkv": _A_in["wqkv"],
        "A_wo": _A_in["wo"],
        "B_x": _B_in["x"],
        "B_wqkv": _B_in["wqkv"],
        "B_wo": _B_in["wo"],
        "gate_w": _w((lambda *s: torch.randn(*s, dtype=torch.bfloat16) * 0.05)(512) * 16.0),
    }

def reference(A_x, A_wqkv, A_wo, B_x, B_wqkv, B_wo, gate_w):
    def _A_ref(x, wqkv, wo):
        B, S, D = x.shape
        H = 32; Dh = D // H
        qkv = (lambda x, *d: x.permute(*d))((x @ wqkv).reshape(B, S, 3, H, Dh), 2, 0, 3, 1, 4)
        q, k, v = qkv[0], qkv[1], qkv[2]
        scale = Dh ** -0.5
        scores = torch.einsum("bhqd,bhkd->bhqk", q, k) * scale
        p = _softmax(scores, axis=-1)
        o = torch.einsum("bhqk,bhkd->bhqd", p, v)
        return (lambda x, *d: x.permute(*d))(o, 0, 2, 1, 3).reshape(B, S, D) @ wo

    def _B_ref(x, wqkv, wo):
        B, S, D = x.shape
        H = 32; Dh = D // H
        qkv = (lambda x, *d: x.permute(*d))((x @ wqkv).reshape(B, S, 3, H, Dh), 2, 0, 3, 1, 4)
        q, k, v = qkv[0], qkv[1], qkv[2]
        phi = lambda t: torch.where(t > 0, t + 1, torch.exp(t)) + 1e-6
        pq, pk = phi(q), phi(k)
        kv = torch.einsum("bhsd,bhse->bhde", pk, v)
        z = torch.einsum("bhsd->bhd", pk)
        num = torch.einsum("bhqd,bhde->bhqe", pq, kv)
        den = torch.einsum("bhqd,bhd->bhq", pq, z)[..., None] + 1e-6
        o = num / den
        return (lambda x, *d: x.permute(*d))(o, 0, 2, 1, 3).reshape(B, S, D) @ wo

    x = A_x
    g = _sigmoid((x * gate_w).sum(-1, keepdims=True))
    a = _A_ref(x, A_wqkv, A_wo)
    b = _B_ref(x, B_wqkv, B_wo)
    return g * a + (1 - g) * b
```

```python
import re


def vr(b, n=1):
    return f"v{b}" if n == 1 else f"v[{b}:{b + n - 1}]"


def ar(b, n=1):
    return f"a{b}" if n == 1 else f"a[{b}:{b + n - 1}]"


def sr(b, n=1):
    return f"s{b}" if n == 1 else f"s[{b}:{b + n - 1}]"


class Asm:
    def __init__(self):
        self.lines = []
        self.uid = 0

    def __call__(self, *ss):
        for s in ss:
            self.lines.append("    " + s)

    def label(self, name):
        self.lines.append(name + ":")

    def raw(self, s):
        self.lines.append(s)

    def c(self, s):
        self.lines.append("    ; " + s)

    def new(self, stem):
        self.uid += 1
        return f"L_{stem}_{self.uid}"

    def nop(self, n):
        while n > 0:
            k = min(n, 16)
            self(f"s_nop {k - 1}")
            n -= k

    def text(self):
        return "\n".join(self.lines) + "\n"


_REG = re.compile(r"(?<![\w.])([vas])(?:(\d+)|\[(\d+):(\d+)\])(?![\w])")
TRANS = ("v_exp_f32", "v_log_f32", "v_rcp_f32", "v_rsq_f32", "v_sqrt_f32", "v_sin_f32", "v_cos_f32")


def regs_of(op):
    out = set()
    for m in _REG.finditer(op):
        k = m.group(1)
        if m.group(2) is not None:
            out.add((k, int(m.group(2))))
        else:
            for i in range(int(m.group(3)), int(m.group(4)) + 1):
                out.add((k, i))
    if re.search(r"\bvcc\b", op):
        out.add(("s", "vcc"))
    if re.search(r"\bm0\b", op):
        out.add(("s", "m0"))
    if re.search(r"\bexec\b", op):
        out.add(("s", "exec"))
    return out


class Ins:
    def __init__(self, text, lineno):
        self.text = text
        self.lineno = lineno
        t = text.split(";")[0].strip()
        parts = t.split(None, 1)
        self.op = parts[0]
        ops = [x.strip() for x in parts[1].split(",")] if len(parts) > 1 else []
        self.ops = ops
        op = self.op
        self.mfma = op.startswith("v_mfma") or op.startswith("v_smfmac")
        self.valu = op.startswith("v_") and not self.mfma
        self.trans = any(op.startswith(t) for t in TRANS)
        self.salu = op.startswith("s_")
        self.ds = op.startswith("ds_")
        self.vmem = op.startswith("buffer_") or op.startswith("global_")
        self.dma = self.vmem and t.endswith(" lds")
        self.states = 1
        if op == "s_nop":
            self.states = int(ops[0], 0) + 1
        self.w, self.r = set(), set()
        self.srcC = set()
        self.srcAB = set()
        self.store_data = set()
        R = [regs_of(o) for o in ops]
        if self.mfma:
            self.w = R[0]
            self.srcAB = R[1] | R[2]
            if op.startswith("v_smfmac"):
                self.srcC = R[0]
                self.srcAB |= R[3]
            else:
                self.srcC = R[3]
            self.r = self.srcAB | self.srcC
            self.passes = 4 if "16x16" in op else 8
        elif self.valu:
            if op.startswith("v_cmp"):
                self.w = R[0]
                self.r = set().union(*R[1:])
            elif op.startswith("v_permlane"):
                self.w = R[0] | R[1]
                self.r = R[0] | R[1]
            elif op.startswith(("v_add_co", "v_addc_co", "v_sub_co")):
                self.w = R[0] | R[1]
                self.r = set().union(*R[2:])
            else:
                self.w = R[0]
                self.r = set().union(*R[1:]) if len(R) > 1 else set()
                if op.startswith(("v_fmac", "v_writelane")):
                    self.r |= R[0]
        elif self.ds:
            if op.startswith(("ds_read", "ds_add_rtn", "ds_bpermute", "ds_swizzle")):
                self.w = R[0]
                self.r = set().union(*R[1:])
            else:
                self.r = set().union(*R)
        elif self.vmem:
            if self.dma:
                self.r = set().union(*R) | {("s", "m0")}
            elif "load" in op:
                self.w = R[0]
                self.r = set().union(*R[1:])
            else:
                self.r = set().union(*R)
                if op.startswith("buffer_store") and op.endswith(("x3", "x4")):
                    self.store_data = R[0]
                if op.startswith("global_store") and op.endswith(("x3", "x4")):
                    self.store_data = R[1]
        elif self.salu:
            if op.startswith(("s_cmp", "s_cbranch", "s_branch", "s_waitcnt", "s_nop", "s_barrier", "s_sleep", "s_setprio", "s_endpgm", "s_bitcmp")):
                self.r = set().union(*R) if R else set()
            else:
                self.w = R[0] if R else set()
                self.r = set().union(*R[1:]) if len(R) > 1 else set()


def need(p, c):
    n = 0
    vw = {x for x in p.w if x[0] in "va"}
    sw = {x for x in p.w if x[0] == "s"}
    if p.valu:
        if c.mfma and vw & c.r:
            n = max(n, 2)
        if c.op.startswith("v_permlane") and vw & c.r:
            n = max(n, 2)
        if c.op.startswith(("v_readfirstlane", "v_readlane")) and vw & c.r:
            n = max(n, 1)
        if p.trans and c.valu and not c.trans and vw & c.r:
            n = max(n, 1)
        if sw:
            if c.vmem and sw & c.r:
                n = max(n, 5)
            if c.valu and sw & c.r:
                n = max(n, 2)
    if p.mfma:
        big = {4: 8, 8: 12}[p.passes]
        ovl = {4: 6, 8: 10}[p.passes]
        if c.mfma:
            if p.w & c.srcAB:
                n = max(n, big)
            if p.w & c.srcC and not (p.w == c.srcC and p.passes == c.passes):
                n = max(n, ovl)
            if p.w & c.w and not (p.w == c.w):
                n = max(n, ovl)
        elif (c.valu or c.ds or c.vmem) and p.w & (c.r | c.w):
            n = max(n, big)
        if c.valu and p.srcC & c.w:
            n = max(n, {4: 3, 8: 7}[p.passes])
    if p.store_data and (c.valu or c.mfma or c.ds or c.vmem) and p.store_data & c.w:
        n = max(n, 2 if c.valu else 1)
    if p.salu and ("s", "m0") in p.w and c.dma:
        n = max(n, 1)
    return n


def check(text, window=24):
    ins, labels = [], {}
    for no, line in enumerate(text.split("\n"), 1):
        t = line.split(";")[0].strip()
        if not t or t.startswith("."):
            continue
        if t.endswith(":"):
            labels[t[:-1]] = len(ins)
            continue
        ins.append(Ins(t, no))

    def succ(i):
        x = ins[i]
        if x.op == "s_endpgm":
            return []
        if x.op == "s_branch":
            return [labels[x.ops[0]]]
        if x.op.startswith("s_cbranch"):
            return [labels[x.ops[0]], i + 1]
        if x.op.startswith(("s_setpc", "s_swappc")):
            return []
        return [i + 1] if i + 1 < len(ins) else []

    bad = []
    for i, p in enumerate(ins):
        if not (p.valu or p.mfma or p.store_data or (p.salu and ("s", "m0") in p.w)):
            continue
        seen = {}
        stack = [(j, 0) for j in succ(i)]
        while stack:
            j, d = stack.pop()
            if j >= len(ins) or d >= window or seen.get(j, 99) <= d:
                continue
            seen[j] = d
            c = ins[j]
            k = need(p, c)
            if k > d:
                bad.append(f"line {p.lineno}: {p.text}  ->  line {c.lineno}: {c.text}  needs {k}, has {d}")
            for s in succ(j):
                stack.append((s, d + c.states))
    return bad
```

```python
import sys, os, math, struct
sys.path.insert(0, os.path.dirname(os.path.abspath(__file__)))
from asmlib import Asm, vr, ar, sr, check

NAME = "gated_mix__softmax_full_mha__linear_attn_block__prompt"

WS_EPOCH = 0
WS_FKV = 0x1000
WS_FZ = 0x3000
WS_FOB = 0x4000
WS_FOA = 0x8000
WS_KV = 0x100000
WS_KVZ = 0x500000
WS_OA = 0x600000
WS_OB = 0x800000
WS_DBG = 0xA00000
WS_SIZE = 0x1000000

SLOT = 24576
L_WQ = 98304
L_Q = 131072
L_EX = 139264
L_MISC = 161792
L_CWB, L_CKV, L_CZ, L_CA, L_CEX = L_MISC, L_MISC + 4, L_MISC + 8, L_MISC + 12, L_MISC + 16
L_G = L_MISC + 64
L_GW = L_MISC + 1024
L_KVP = 106496
L_PQ = 122880
L_STG = 0
L_AP = 65536
L_KVX = L_KVP
L_BX = L_EX
L_GA = 0
PT = 2304
LDS_BYTES = 163840

S_X, S_WA, S_WB, S_WOA, S_WOB, S_GW, S_OUT, S_WS = 24, 28, 32, 36, 40, 44, 48, 52
sNON = 56
sP, sRB, sC0, sW, sTT, sHH = 58, 59, 60, 61, 62, 63
sCW = 64
sT0, sT1, sT2, sT3, sT4, sT5 = 72, 73, 74, 75, 76, 77
sROT, sCNT = 78, 79
sVM = 80
sLX, sLW = 4, 5
sCXB = 6
sSPIN = 7
sSAV = 8
sONE = 10
STAMP0 = 82

SPIN_LIMIT = 1 << 20
ONES = 0x3F803F80
QSCALE = 0.25 * math.log2(math.e)
LOG2E = math.log2(math.e)


def f32(x):
    return "0x%08x" % struct.unpack("<I", struct.pack("<f", x))[0]


vQ, vS, vKB, vVB, vIDX, vAK, vAV = 16, (32, 48), (64, 68, 72), (76, 84, 92), 100, 101, 102


class Gen:
    def __init__(self, opt):
        self.o = opt
        self.a = Asm()
        self.nstamp = 0

    def stamp(self, i):
        if self.o.get("stamps"):
            self.a(f"s_memtime {sr(STAMP0 + 2 * i, 2)}")

    def dump_stamps(self):
        if not self.o.get("stamps"):
            return
        a = self.a
        a("s_waitcnt vmcnt(0) lgkmcnt(0)")
        for i in range(10):
            a(f"v_mov_b32 v{104 + i}, s{STAMP0 + 2 * i}")
        a(f"s_lshl_b32 s{sT0}, s2, 3", f"s_add_u32 s{sT0}, s{sT0}, s{sW}", f"s_lshl_b32 s{sT0}, s{sT0}, 6",
          f"s_add_u32 s{sT0}, s{sT0}, {WS_DBG}", "v_mov_b32 v2, 0", "s_mov_b64 exec, 1")
        a(f"buffer_store_dwordx4 v[104:107], v2, {sr(S_WS, 4)}, s{sT0} offen")
        a(f"buffer_store_dwordx4 v[108:111], v2, {sr(S_WS, 4)}, s{sT0} offen offset:16")
        a(f"buffer_store_dwordx2 v[112:113], v2, {sr(S_WS, 4)}, s{sT0} offen offset:32")
        a("s_mov_b64 exec, -1")

    def dma(self, voff, srd, sbase, goff, lbase, loff):
        a = self.a
        a(f"s_add_u32 m0, s{lbase}, {loff}")
        a(f"s_add_u32 s{sT0}, s{sbase}, {goff}")
        a(f"buffer_load_dwordx4 v{voff}, {sr(srd, 4)}, s{sT0} offen lds")

    def lds_spin(self, vaddr, vtmp, off, target):
        a = self.a
        top, done = a.new("spin"), a.new("spun")
        a(f"s_mov_b32 s{sSPIN}, 0")
        a.label(top)
        a(f"ds_read_b32 v{vtmp}, v{vaddr} offset:{off}", "s_waitcnt lgkmcnt(0)", f"v_readfirstlane_b32 s{sT0}, v{vtmp}",
          f"s_add_u32 s{sSPIN}, s{sSPIN}, 1", f"s_cmp_ge_u32 s{sT0}, {target}", f"s_cbranch_scc1 {done}",
          "s_sleep 1", f"s_cmp_lt_u32 s{sSPIN}, {SPIN_LIMIT}", f"s_cbranch_scc1 {top}")
        a.label(done)

    def lds_inc(self, vaddr, vtmp, off):
        a = self.a
        a(f"v_mov_b32 v{vtmp}, 1", "s_mov_b64 exec, 1", f"ds_add_u32 v{vaddr}, v{vtmp} offset:{off}", "s_mov_b64 exec, -1")

    def poll(self, n, vl8, vt, soff):
        a = self.a
        top, done = a.new("poll"), a.new("polled")
        a(f"s_mov_b32 s{sSPIN}, 0", f"s_mov_b32 exec_lo, {hex((1 << n) - 1)}", "s_mov_b32 exec_hi, 0")
        a.label(top)
        a(f"buffer_load_dwordx2 {vr(vt, 2)}, v{vl8}, {sr(S_WS, 4)}, s{soff} offen sc1", "s_waitcnt vmcnt(0)",
          f"v_cmp_ne_u64 vcc, {sr(sNON, 2)}, {vr(vt, 2)}", f"s_add_u32 s{sSPIN}, s{sSPIN}, 1",
          "s_cmp_eq_u64 vcc, 0", f"s_cbranch_scc1 {done}", "s_sleep 2",
          f"s_cmp_lt_u32 s{sSPIN}, {SPIN_LIMIT}", f"s_cbranch_scc1 {top}")
        a.label(done)
        a("s_mov_b64 exec, -1")

    def flag(self, n, vaddr, vt, soff):
        a = self.a
        a(f"v_mov_b32 v{vt}, s{sNON}", f"v_mov_b32 v{vt + 1}, s{sNON + 1}", f"s_mov_b64 exec, {hex((1 << n) - 1)}",
          f"buffer_store_dwordx2 {vr(vt, 2)}, v{vaddr}, {sr(S_WS, 4)}, s{soff} offen sc1", "s_mov_b64 exec, -1")

    def x_addrs(self, dst, t0, t1):
        a = self.a
        a(f"v_bfe_u32 v{t0}, v1, 3, 2", f"v_lshlrev_b32 v{t0}, 10, v{t0}",
          f"v_and_b32 v{t1}, 7, v1", f"v_lshl_add_u32 v{t0}, v{t1}, 7, v{t0}",
          f"s_lshl_b32 s{sT0}, s{sTT}, 12", f"v_add_u32 v{t0}, s{sT0}, v{t0}",
          f"v_bfe_u32 v{t1}, v1, 1, 3", f"v_lshrrev_b32 v{dst}, 5, v1", f"v_xor_b32 v{t1}, v{t1}, v{dst}")
        for s in range(4):
            a(f"v_xor_b32 v{dst + s}, {2 * s}, v{t1}", f"v_lshl_add_u32 v{dst + s}, v{dst + s}, 4, v{t0}",
              f"v_add_u32 v{dst + 4 + s}, {2 * SLOT}, v{dst + s}")

    def tr_addr(self, dst, t, hshift):
        a = self.a
        a(f"v_lshrrev_b32 v{dst}, 5, v1", f"v_lshlrev_b32 v{dst}, {hshift}, v{dst}",
          f"v_bfe_u32 v{t}, v1, 2, 2", f"v_lshl_add_u32 v{dst}, v{t}, 6, v{dst}",
          f"v_bfe_u32 v{t}, v1, 4, 1", f"v_lshl_add_u32 v{dst}, v{t}, 5, v{dst}",
          f"v_and_b32 v{t}, 3, v1", f"v_lshl_add_u32 v{dst}, v{t}, 3, v{dst}")

    def vrow_addr(self, dst, t):
        a = self.a
        a(f"v_and_b32 v{dst}, 15, v1", f"v_lshrrev_b32 v{t}, 5, v1", f"v_lshl_add_u32 v{dst}, v{t}, 4, v{dst}",
          f"v_lshlrev_b32 v{dst}, 4, v{dst}", f"v_add_u32 v{dst}, 1024, v{dst}")

    def mfma(self, d, A, B, C):
        self.a(f"v_mfma_f32_32x32x16_bf16 {d}, {A}, {B}, {C}")

    def zero_acc(self, vz):
        for q in range(4):
            self.mfma(ar(16 * q, 16), vr(vz, 4), vr(vz, 4), "0")

    def attn_tile(self, b, qi, pend, nxt, extra=None):
        a = self.a
        cur, oth = vS[qi & 1], vS[(qi + 1) & 1]
        extra = extra or {}
        for e in range(16):
            if e == 2 and pend:
                a(f"v_smfmac_f32_32x32x32_bf16 {ar(16 * pend[1], 16)}, {vr(vVB[pend[0]] + 4, 4)}, {vr(oth + 8, 8)}, v{vIDX}")
            for x in extra.get(e, []):
                a(x)
            if e == 5 and nxt:
                self.mfma(vr(oth, 16), vr(vKB[nxt[0]], 4), vr(vQ + 4 * nxt[1], 4), "0")
            if e == 10:
                a(f"v_smfmac_f32_32x32x32_bf16 {ar(16 * qi, 16)}, {vr(vVB[b], 4)}, {vr(cur, 8)}, v{vIDX}")
            a(f"v_exp_f32 v{cur + e}, v{cur + e}")

    def kv_loads(self, b):
        return [f"buffer_load_dwordx4 {vr(vKB[b], 4)}, v{vAK}, {sr(S_WS, 4)}, s{sROT} offen sc1",
                f"s_mov_b64 exec, {sr(sVM, 2)}",
                f"buffer_load_dwordx4 {vr(vVB[b], 4)}, v{vAV}, {sr(S_WS, 4)}, s{sROT} offen sc1",
                f"buffer_load_dwordx4 {vr(vVB[b] + 4, 4)}, v{vAV}, {sr(S_WS, 4)}, s{sROT} offen offset:512 sc1",
                "s_mov_b64 exec, -1",
                f"s_add_u32 s{sROT}, s{sROT}, 2048", f"s_and_b32 s{sROT}, s{sROT}, 0x7fff"]

    def build(self):
        a = self.a
        o = self.o
        a(f"s_cmp_ge_u32 s2, 256", "s_cbranch_scc1 L_end")
        if o.get("stamps"):
            a(f"s_memrealtime {sr(STAMP0, 2)}")
        self.stamp(1)
        for srd, slot in ((S_X, 0), (S_WA, 1), (S_WS, 9), (S_WB, 4), (S_WOA, 2), (S_WOB, 5), (S_GW, 6), (S_OUT, 7)):
            a(f"s_load_dwordx2 {sr(srd, 2)}, s[0:1], {slot * 8}")
        a("v_lshrrev_b32 v2, 6, v0", "v_and_b32 v1, 63, v0", f"v_readfirstlane_b32 s{sW}, v2")
        for srd, size in ((S_X, 2097152), (S_WA, 1572864), (S_WB, 1572864), (S_WOA, 524288), (S_WOB, 524288),
                          (S_GW, 1024), (S_OUT, 2097152), (S_WS, WS_SIZE)):
            a(f"s_mov_b32 s{srd + 2}, {size}", f"s_mov_b32 s{srd + 3}, 0x20000")
        a.c("workgroup -> (head pair p, row block rb); round-robin XCD placement only changes speed")
        a(f"s_and_b32 s{sT0}, s2, 7", f"s_lshr_b32 s{sT1}, s2, 3",
          f"s_and_b32 s{sP}, s{sT0}, 3", f"s_lshl_b32 s{sP}, s{sP}, 2", f"s_and_b32 s{sT2}, s{sT1}, 3",
          f"s_add_u32 s{sP}, s{sP}, s{sT2}",
          f"s_lshr_b32 s{sRB}, s{sT0}, 2", f"s_lshl_b32 s{sRB}, s{sRB}, 3", f"s_lshr_b32 s{sT1}, s{sT1}, 2",
          f"s_add_u32 s{sRB}, s{sRB}, s{sT1}",
          f"s_lshl_b32 s{sC0}, s{sT2}, 1", f"s_add_u32 s{sC0}, s{sC0}, s{sRB}", f"s_and_b32 s{sC0}, s{sC0}, 7",
          f"s_and_b32 s{sTT}, s{sW}, 3", f"s_and_b32 s{sHH}, s{sW}, 1",
          f"s_mov_b32 s{sVM}, 0xffff", f"s_mov_b32 s{sVM + 1}, 0xffff",
          f"s_cmp_ge_u32 s{sW}, 4", "s_cbranch_scc1 L_bwave")
        self.a_path()
        self.b_path()
        self.attn_main()
        self.a_post()
        self.b_final()
        a.label("L_end")
        a("s_endpgm")
        return a.text()

    def setup_nonce(self):
        a = self.a
        a(f"s_add_u32 s{sNON}, s{sNON}, 1", f"s_addc_u32 s{sNON + 1}, s{sNON + 1}, 0")

    def a_path(self):
        a = self.a
        vXA, vWA, vX, vWK, vWV, aK, aV, pK, pV = 4, 12, 16, 32, 48, 64, 80, 96, 104
        a.c("==== A waves")
        self.x_addrs(vXA, 2, 3)
        self.tr_addr(vWA, 2, 9)
        a(f"v_add_u32 v{vWA + 1}, {2 * SLOT}, v{vWA}")
        a("s_waitcnt lgkmcnt(0)")
        a(f"s_load_dwordx2 {sr(sNON, 2)}, {sr(S_WS, 2)}, {WS_EPOCH}")
        skip = a.new("nomisc")
        a(f"s_cmp_lg_u32 s{sW}, 0", f"s_cbranch_scc1 {skip}")
        a.c("wave 0: clear the LDS counters, fetch gate_w")
        a("v_lshlrev_b32 v2, 4, v1", f"s_mov_b32 m0, {L_GW}", "v_mov_b32 v3, 0",
          f"buffer_load_dwordx4 v2, {sr(S_GW, 4)}, 0 offen lds",
          "v_lshlrev_b32 v2, 2, v1", f"v_add_u32 v2, {L_MISC}, v2", "s_mov_b64 exec, 0xffff",
          "ds_write_b32 v2, v3", "s_mov_b64 exec, -1", "s_waitcnt vmcnt(0)")
        a.label(skip)
        a.c("store / exchange addresses")
        a("v_and_b32 v2, 0x33, v1", "v_bfe_u32 v3, v1, 2, 1", "v_lshl_add_u32 v2, v3, 3, v2",
          "v_bfe_u32 v3, v1, 3, 1", "v_lshl_add_u32 v2, v3, 2, v2", "v_lshlrev_b32 v14, 4, v2")
        self.vrow_addr(15, 2)
        a("s_waitcnt lgkmcnt(0)")
        self.setup_nonce()
        for i in range(8):
            a("s_barrier")
            if i == 0:
                self.stamp(2)
            k = i % 4
            hs, off = k >> 1, (k & 1) * SLOT

            def rd(s):
                a(f"ds_read_b128 {vr(vX + 4 * s, 4)}, v{vXA + 4 * hs + s} offset:{off}")
                for dst, t in ((vWK, 0), (vWV, 1)):
                    base = off + 16384 + t * 4096 + s * 1024
                    a(f"ds_read_b64_tr_b16 {vr(dst + 4 * s, 2)}, v{vWA + hs} offset:{base}",
                      f"ds_read_b64_tr_b16 {vr(dst + 4 * s + 2, 2)}, v{vWA + hs} offset:{base + 256}")

            def mm(s):
                first = i == 0 and s == 0
                self.mfma(vr(aK, 16), vr(vWK + 4 * s, 4), vr(vX + 4 * s, 4), "0" if first else vr(aK, 16))
                self.mfma(vr(aV, 16), vr(vX + 4 * s, 4), vr(vWV + 4 * s, 4), "0" if first else vr(aV, 16))
            rd(0), rd(1), rd(2)
            a("s_waitcnt lgkmcnt(10)")
            mm(0)
            rd(3)
            a("s_waitcnt lgkmcnt(10)")
            mm(1)
            a("s_waitcnt lgkmcnt(5)")
            mm(2)
            a("s_waitcnt lgkmcnt(0)")
            mm(3)
        self.stamp(3)
        a.c("K/V block offsets: ws + KV + (((p*2+hh)*4+tt)*16+rb)*2048")
        a(f"s_lshl_b32 s{sT1}, s{sP}, 18", f"s_lshl_b32 s{sT2}, s{sTT}, 15", f"s_add_u32 s{sT1}, s{sT1}, s{sT2}",
          f"s_lshl_b32 s{sT2}, s{sRB}, 11", f"s_add_u32 s{sT1}, s{sT1}, s{sT2}", f"s_add_u32 s{sT1}, s{sT1}, {WS_KV}",
          f"s_add_u32 s{sT2}, s{sT1}, {1 << 17}")
        a("v_bfe_u32 v2, v1, 4, 1", "v_lshl_add_u32 v3, v2, 17, v15", "v_lshl_add_u32 v13, v2, 11, v15",
          f"s_lshl_b32 s{sT3}, s{sTT}, 12", f"s_add_u32 s{sT3}, s{sT3}, {L_EX}")
        a(f"v_add_u32 v12, s{sT3}, v14", f"v_add_u32 v13, s{sT3}, v13")
        for j in range(8):
            a(f"v_cvt_pk_bf16_f32 v{pK + j}, v{aK + 2 * j}, v{aK + 2 * j + 1}")
        a(f"buffer_store_dwordx4 {vr(pK, 4)}, v14, {sr(S_WS, 4)}, s{sT1} offen sc1",
          f"buffer_store_dwordx4 {vr(pK + 4, 4)}, v14, {sr(S_WS, 4)}, s{sT2} offen sc1")
        for j in range(8):
            a(f"v_cvt_pk_bf16_f32 v{pV + j}, v{aV + 2 * j}, v{aV + 2 * j + 1}")
        a(f"buffer_store_dwordx4 {vr(pV, 4)}, v3, {sr(S_WS, 4)}, s{sT1} offen sc1",
          f"buffer_store_dwordx4 {vr(pV + 4, 4)}, v3, {sr(S_WS, 4)}, s{sT1} offen offset:512 sc1")
        a.c("same blocks into LDS for this workgroup's own first tiles")
        a(f"ds_write_b128 v12, {vr(pK, 4)}", f"ds_write_b128 v12, {vr(pK + 4, 4)} offset:2048",
          f"ds_write_b128 v13, {vr(pV, 4)}", f"ds_write_b128 v13, {vr(pV + 4, 4)} offset:512")
        a("s_barrier")
        a.c("attention state while the stores drain")
        self.attn_init(a_wave=True)
        a(f"s_lshl_b32 s{sT1}, s{sP}, 9", f"s_lshl_b32 s{sT2}, s{sTT}, 7", f"s_add_u32 s{sT1}, s{sT1}, s{sT2}",
          f"s_lshl_b32 s{sT2}, s{sRB}, 3", f"s_add_u32 s{sT1}, s{sT1}, s{sT2}", f"s_add_u32 s{sT1}, s{sT1}, {WS_FKV}",
          "v_mov_b32 v4, 0")
        a("s_waitcnt vmcnt(0)")
        self.flag(1, 4, 2, sT1)
        self.stamp(4)
        a("s_waitcnt lgkmcnt(0)", "s_barrier")
        a.c("Q fragments and the two own key tiles (tt = w>>1 and w>>1 + 2) of head hh")
        a(f"s_lshl_b32 s{sT1}, s{sHH}, 10", f"s_add_u32 s{sT1}, s{sT1}, {L_Q}", "v_lshlrev_b32 v2, 4, v1",
          f"v_add_u32 v3, s{sT1}, v2")
        for q in range(4):
            a(f"ds_read_b128 {vr(vQ + 4 * q, 4)}, v3 offset:{q * 2048}")
        a(f"s_lshr_b32 s{sT1}, s{sW}, 1", f"s_lshl_b32 s{sT1}, s{sT1}, 12", f"s_lshl_b32 s{sT2}, s{sHH}, 11",
          f"s_add_u32 s{sT1}, s{sT1}, s{sT2}", f"s_add_u32 s{sT1}, s{sT1}, {L_EX}",
          f"v_add_u32 v2, s{sT1}, v2", f"v_add_u32 v3, s{sT1}, v15")
        a(f"ds_read_b128 {vr(vKB[1], 4)}, v2", f"ds_read_b128 {vr(vKB[2], 4)}, v2 offset:8192",
          f"s_mov_b64 exec, {sr(sVM, 2)}",
          f"ds_read_b128 {vr(vVB[1], 4)}, v3", f"ds_read_b128 {vr(vVB[1] + 4, 4)}, v3 offset:512",
          f"ds_read_b128 {vr(vVB[2], 4)}, v3 offset:8192", f"ds_read_b128 {vr(vVB[2] + 4, 4)}, v3 offset:8704",
          "s_mov_b64 exec, -1", f"v_mov_b32 v4, {L_MISC}", "s_waitcnt lgkmcnt(0)")
        self.mfma(vr(vS[0], 16), vr(vKB[1], 4), vr(vQ, 4), "0")
        self.lds_inc(4, 5, L_CEX - L_MISC)
        a.nop(8)
        for b in (1, 2):
            for qi in range(4):
                pend = (b, qi - 1) if qi else ((1, 3) if b == 2 else None)
                nxt = (b, qi + 1) if qi < 3 else ((2, 0) if b == 1 else None)
                self.attn_tile(b, qi, pend, nxt)
        self.stamp(5)
        a("s_branch L_attn")

    def attn_init(self, a_wave):
        a = self.a
        a(f"v_mov_b32 v{vIDX}, 0xdddddddd")
        for r in range(4):
            a(f"v_mov_b32 v{vS[1] + 8 + r}, 0")
        if not a_wave:
            for r in range(4, 8):
                a(f"v_mov_b32 v{vS[1] + 8 + r}, 0")
        for r in range(24):
            a(f"v_mov_b32 v{vVB[0] + r}, {hex(ONES)}")
        self.zero_acc(vS[1] + 8)
        a.c("this wave's key tiles: head hh, token tile (w>>1) for A waves / 2 + ((w-4)>>1) for B waves")
        a(f"s_lshr_b32 s{sT1}, s{sW}, 1", f"s_lshl_b32 s{sT1}, s{sT1}, 15", f"s_lshl_b32 s{sT2}, s{sP}, 18",
          f"s_add_u32 s{sT1}, s{sT1}, s{sT2}", f"s_lshl_b32 s{sT2}, s{sHH}, 17", f"s_add_u32 s{sT1}, s{sT1}, s{sT2}",
          f"s_add_u32 s{sT1}, s{sT1}, {WS_KV}",
          f"v_lshlrev_b32 v{vAK}, 4, v1", f"v_add_u32 v{vAK}, s{sT1}, v{vAK}", f"v_add_u32 v{vAV}, s{sT1}, v15",
          f"s_add_u32 s{sROT}, s{sRB}, 1", f"s_and_b32 s{sROT}, s{sROT}, 15", f"s_lshl_b32 s{sROT}, s{sROT}, 11")

    def b_path(self):
        a = self.a
        vXE, vXO, vWO, vXA, vWA = 2, 3, 14, 4, 12
        a.label("L_bwave")
        a.c("==== B waves")
        a("v_lshrrev_b32 v4, 3, v1", "v_lshrrev_b32 v5, 4, v1", "v_and_b32 v6, 7, v1", "v_xor_b32 v5, v5, v6",
          "v_lshlrev_b32 v4, 10, v4", f"v_lshl_add_u32 v{vXE}, v5, 4, v4", f"v_xor_b32 v{vXO}, 64, v{vXE}",
          "v_lshrrev_b32 v4, 2, v1", "v_and_b32 v5, 3, v1", "v_mul_u32_u24 v4, 3072, v4",
          f"v_lshl_add_u32 v{vWO}, v5, 4, v4")
        a(f"s_lshl_b32 s{sLX}, s{sTT}, 12", f"s_lshl_b32 s{sLW}, s{sTT}, 10",
          f"s_lshl_b32 s{sCXB}, s{sRB}, 17", f"s_lshl_b32 s{sT1}, s{sTT}, 15", f"s_add_u32 s{sCXB}, s{sCXB}, s{sT1}",
          f"s_mul_i32 s{sT2}, s{sTT}, {16 * 3072}", f"s_lshl_b32 s{sT1}, s{sP}, 6", f"s_add_u32 s{sT2}, s{sT2}, s{sT1}")
        issued = []

        def chunk(i):
            a(f"s_add_u32 s{sT1}, s{sC0}, {i}", f"s_and_b32 s{sT1}, s{sT1}, 7",
              f"s_mul_i32 s{sCW + i}, s{sT1}, {64 * 3072}", f"s_add_u32 s{sCW + i}, s{sCW + i}, s{sT2}",
              f"s_lshl_b32 s{sT1}, s{sT1}, 7", f"s_add_u32 s{sT1}, s{sT1}, s{sCXB}")

        def job(i):
            chunk(i)
            base = (i % 4) * SLOT
            for gi in range(4):
                self.dma(vXO if gi & 1 else vXE, S_X, sT1, gi * 8192, sLX, base + gi * 1024)
                issued.append(("p", i))
            for t in range(2):
                self.dma(vWO, S_WA, sCW + i, 1024 * (t + 1), sLW, base + 16384 + t * 4096)
                issued.append(("p", i))

        def wq(i):
            self.dma(vWO, S_WA, sCW + i, 0, sLW, L_WQ + i * 4096)
            issued.append(("q", 0))

        def wb(i, t):
            self.dma(vWO, S_WB, sCW + i, 1024 * t, sLW, i * 12288 + t * 4096)
            issued.append(("b", 0))

        def wait_for(tag):
            last = max(n for n, x in enumerate(issued) if x == tag)
            return len(issued) - 1 - last
        a("s_waitcnt lgkmcnt(0)")
        job(0)
        a(f"s_load_dwordx2 {sr(sNON, 2)}, {sr(S_WS, 2)}, {WS_EPOCH}")
        job(1), job(2)
        self.x_addrs(vXA, 15, 16)
        self.tr_addr(vWA, 15, 9)
        a(f"v_add_u32 v{vWA + 1}, {2 * SLOT}, v{vWA}")
        a("s_waitcnt lgkmcnt(0)")
        self.setup_nonce()
        for i in range(8):
            a(f"s_waitcnt vmcnt({wait_for(('p', i))}) lgkmcnt(0)", "s_barrier")
            if i == 0:
                self.stamp(2)
            k = i % 4
            for s in range(4):
                a(f"ds_read_b128 {ar(16 * i + 4 * s, 4)}, v{vXA + 4 * (k >> 1) + s} offset:{(k & 1) * SLOT}")
            if i + 3 < 8:
                job(i + 3)
            elif i < 7:
                for j in range(4):
                    wq(4 * (i - 5) + j)
            else:
                for j in range(2):
                    for t in range(3):
                        wb(j, t)
        a(f"s_waitcnt vmcnt({wait_for(('q', 0))}) lgkmcnt(0)", "s_barrier")
        self.stamp(3)
        a.c("Q = x Wq (transposed tile), the rest of Wb is requested in between")
        vWB, aQ = 16, 64
        a(f"v_add_u32 v15, {L_WQ}, v{vWA}")
        rest = [(i, t) for i in range(2, 8) for t in range(3)]

        def qrd(n):
            d = vWB + 4 * (n % 4)
            a(f"ds_read_b64_tr_b16 {vr(d, 2)}, v15 offset:{n * 1024}",
              f"ds_read_b64_tr_b16 {vr(d + 2, 2)}, v15 offset:{n * 1024 + 256}")
        qrd(0), qrd(1), qrd(2)
        for n in range(32):
            if n + 3 < 32:
                qrd(n + 3)
            a(f"s_waitcnt lgkmcnt({2 * min(3, 31 - n)})")
            self.mfma(vr(aQ, 16), vr(vWB + 4 * (n % 4), 4), ar(4 * n, 4), "0" if n == 0 else vr(aQ, 16))
            if rest and n % 5 in (0, 2, 4):
                wb(*rest.pop(0))
        while rest:
            wb(*rest.pop(0))
        a(f"s_mov_b32 s{sT1}, {f32(QSCALE)}", f"s_lshl_b32 s{sT2}, s{sTT}, 11", f"s_add_u32 s{sT2}, s{sT2}, {L_Q}",
          "v_lshlrev_b32 v2, 4, v1", f"v_add_u32 v2, s{sT2}, v2")
        a.nop(8)
        for r in range(16):
            a(f"v_mul_f32 v{aQ + r}, s{sT1}, v{aQ + r}")
        for j in range(8):
            a(f"v_cvt_pk_bf16_f32 v{vWB + j}, v{aQ + 2 * j}, v{aQ + 2 * j + 1}")
        a(f"ds_write_b128 v2, {vr(vWB, 4)}", f"ds_write_b128 v2, {vr(vWB + 4, 4)} offset:1024",
          "s_waitcnt lgkmcnt(0)", "s_barrier")
        self.stamp(4)
        a(f"v_mov_b32 v4, {L_MISC}", "s_waitcnt vmcnt(0)")
        self.lds_inc(4, 5, L_CWB - L_MISC)
        self.lds_spin(4, 5, L_CWB - L_MISC, 4)
        self.stamp(5)
        a.c("linear-attention projections: q (transposed tile), k, v")
        aq, ak, av, ag = 52, 68, 84, 100

        def brd(n):
            i, s = n >> 2, n & 3
            hs = i >> 2
            for t in range(3):
                d = vWB + 12 * (n % 3) + 4 * t
                off = i * 12288 + t * 4096 + s * 1024 - hs * 2 * SLOT
                a(f"ds_read_b64_tr_b16 {vr(d, 2)}, v{vWA + hs} offset:{off}",
                  f"ds_read_b64_tr_b16 {vr(d + 2, 2)}, v{vWA + hs} offset:{off + 256}")
        brd(0), brd(1)
        for n in range(32):
            if n + 2 < 32:
                brd(n + 2)
            a(f"s_waitcnt lgkmcnt({6 * min(2, 31 - n)})")
            d = vWB + 12 * (n % 3)
            z = n == 0
            self.mfma(vr(aq, 16), vr(d, 4), ar(4 * n, 4), "0" if z else vr(aq, 16))
            self.mfma(vr(ak, 16), ar(4 * n, 4), vr(d + 4, 4), "0" if z else vr(ak, 16))
            self.mfma(vr(av, 16), ar(4 * n, 4), vr(d + 8, 4), "0" if z else vr(av, 16))
        a.c("gate logit of the token tile this workgroup finishes (tt == p & 3)")
        nog = a.new("nogate")
        a(f"s_and_b32 s{sT1}, s{sP}, 3", f"s_cmp_lg_u32 s{sT1}, s{sTT}", f"s_cbranch_scc1 {nog}")
        a("v_lshrrev_b32 v2, 5, v1", "v_lshlrev_b32 v2, 4, v2", f"v_add_u32 v2, {L_GW}, v2")
        for i in range(8):
            a(f"s_add_u32 s{sT1}, s{sC0}, {i}", f"s_and_b32 s{sT1}, s{sT1}, 7", f"s_lshl_b32 s{sT1}, s{sT1}, 7",
              f"v_add_u32 v3, s{sT1}, v2")
            for s in range(4):
                a(f"ds_read_b128 {vr(vWB + 4 * s, 4)}, v3 offset:{32 * s}")
            for s in range(4):
                a(f"s_waitcnt lgkmcnt({3 - s})")
                n = 4 * i + s
                self.mfma(vr(ag, 16), vr(vWB + 4 * s, 4), ar(4 * n, 4), "0" if n == 0 else vr(ag, 16))
        a(f"s_mov_b32 s{sT1}, {f32(-LOG2E)}", "v_and_b32 v2, 31, v1", "v_lshlrev_b32 v2, 2, v2",
          f"v_add_u32 v2, {L_G}, v2")
        a.nop(10)
        a.c("g = bf16(sigmoid(bf16(logit)))")
        a(f"v_cvt_pk_bf16_f32 v3, v{ag}, v{ag}", "v_and_b32 v3, 0xffff0000, v3", f"v_mul_f32 v3, s{sT1}, v3",
          "v_exp_f32 v3, v3", "s_nop 0", "v_add_f32 v3, 1.0, v3", "v_rcp_f32 v3, v3", "s_nop 0",
          "v_cvt_pk_bf16_f32 v3, v3, v3", "v_and_b32 v3, 0xffff0000, v3", "ds_write_b32 v2, v3")
        a.label(nog)
        a.c("phi(t) = (t > 0 ? t + 1 : exp(t)) + 1e-6")
        a(f"s_mov_b32 s{sT1}, {f32(LOG2E)}", f"s_mov_b32 s{sT2}, {f32(1e-6)}", f"s_mov_b32 s{sONE}, {hex(ONES)}")
        a.nop(10)
        for base in (aq, ak):
            for r0 in range(0, 16, 4):
                for r in range(r0, r0 + 4):
                    a(f"v_mul_f32 v{vWB + r - r0}, s{sT1}, v{base + r}")
                for r in range(r0, r0 + 4):
                    a(f"v_exp_f32 v{vWB + r - r0}, v{vWB + r - r0}")
                for r in range(r0, r0 + 4):
                    a(f"v_cmp_lt_f32 vcc, 0, v{base + r}", f"v_add_f32 v{base + r}, 1.0, v{base + r}", "s_nop 0",
                      f"v_cndmask_b32 v{base + r}, v{vWB + r - r0}, v{base + r}, vcc",
                      f"v_add_f32 v{base + r}, s{sT2}, v{base + r}")
        pq, pk, pv0, pv1 = 16, 24, 32, 40
        for j in range(8):
            a(f"v_cvt_pk_bf16_f32 v{pq + j}, v{aq + 2 * j}, v{aq + 2 * j + 1}")
        a(f"s_lshl_b32 s{sT1}, s{sTT}, 11", f"s_add_u32 s{sT1}, s{sT1}, {L_PQ}", "v_lshlrev_b32 v2, 4, v1",
          f"v_add_u32 v3, s{sT1}, v2",
          f"ds_write_b128 v3, {vr(pq, 4)}", f"ds_write_b128 v3, {vr(pq + 4, 4)} offset:1024")
        for j in range(8):
            a(f"v_cvt_pk_bf16_f32 v{pk + j}, v{ak + 2 * j}, v{ak + 2 * j + 1}")
        for j in range(8):
            a(f"v_cvt_pk_bf16_f32 v{pv0 + j}, v{av + 2 * j}, v{av + 2 * j + 1}")
        a(f"v_mov_b32 v5, s{sONE}")
        for j in range(8):
            a(f"v_cndmask_b32 v{pv1 + j}, v{pv0 + j}, v5, {sr(sVM, 2)}")
        for j in range(8):
            a(f"v_cndmask_b32 v{pv0 + j}, v5, v{pv0 + j}, {sr(sVM, 2)}")
        a("s_nop 1")
        self.mfma(vr(ak, 16), vr(pk, 4), vr(pv1, 4), "0")
        self.mfma(vr(aq, 16), vr(pk, 4), vr(pv0, 4), "0")
        self.mfma(vr(ak, 16), vr(pk + 4, 4), vr(pv1 + 4, 4), vr(ak, 16))
        self.mfma(vr(aq, 16), vr(pk + 4, 4), vr(pv0 + 4, 4), vr(aq, 16))
        a(f"s_lshl_b32 s{sT1}, s{sTT}, 12", f"s_add_u32 s{sT1}, s{sT1}, {L_KVP}", f"v_add_u32 v3, s{sT1}, v2")
        a.nop(10)
        a(f"ds_write_b128 v3, {vr(aq, 4)}", f"ds_write_b128 v3, {vr(aq + 4, 4)} offset:1024",
          f"ds_write_b128 v3, {vr(ak + 8, 4)} offset:2048", f"ds_write_b128 v3, {vr(ak + 12, 4)} offset:3072",
          "v_mov_b32 v5, 1", "s_waitcnt lgkmcnt(0)", "s_mov_b64 exec, 1",
          f"ds_add_rtn_u32 v5, v4, v5 offset:{L_CKV - L_MISC}", "s_waitcnt lgkmcnt(0)",
          f"v_readfirstlane_b32 s{sT1}, v5", "s_mov_b64 exec, -1")
        notlast = a.new("notlast")
        a(f"s_cmp_lg_u32 s{sT1}, 3", f"s_cbranch_scc1 {notlast}")
        a.c("last of the four: add the partial (kv | z) tiles in fixed order and publish")
        a(f"v_add_u32 v3, {L_KVP}, v2")
        for w in range(4):
            for q in range(4):
                a(f"ds_read_b128 {vr(16 + 16 * w + 4 * q, 4)}, v3 offset:{w * 4096 + q * 1024}")
            if w == 2:
                a("s_waitcnt lgkmcnt(4)")
                for r in range(0, 16, 2):
                    a(f"v_pk_add_f32 {vr(16 + r, 2)}, {vr(16 + r, 2)}, {vr(32 + r, 2)}")
        a("s_waitcnt lgkmcnt(0)")
        self.lds_inc(4, 5, L_CZ - L_MISC)
        for r in range(0, 16, 2):
            a(f"v_pk_add_f32 {vr(48 + r, 2)}, {vr(48 + r, 2)}, {vr(64 + r, 2)}")
        for r in range(0, 16, 2):
            a(f"v_pk_add_f32 {vr(16 + r, 2)}, {vr(16 + r, 2)}, {vr(48 + r, 2)}")
        a(f"s_lshl_b32 s{sT1}, s{sP}, 4", f"s_add_u32 s{sT1}, s{sT1}, s{sRB}", f"s_lshl_b32 s{sT2}, s{sT1}, 12",
          f"s_add_u32 s{sT2}, s{sT2}, {WS_KVZ}", f"s_lshl_b32 s{sT1}, s{sT1}, 3", f"s_add_u32 s{sT1}, s{sT1}, {WS_FZ}")
        for q in range(4):
            a(f"buffer_store_dwordx4 {vr(16 + 4 * q, 4)}, v2, {sr(S_WS, 4)}, s{sT2} offen offset:{q * 1024} sc1")
        a("v_mov_b32 v3, 0", "s_waitcnt vmcnt(0)")
        self.flag(1, 3, 6, sT1)
        a.label(notlast)
        self.stamp(6)
        self.vrow_addr(15, 3)
        self.attn_init(a_wave=False)
        a.c("Q fragments, rotated so that local tiles 0,1 are the ones this wave finishes")
        a(f"s_lshl_b32 s{sT1}, s{sHH}, 10", f"s_add_u32 s{sT1}, s{sT1}, {L_Q}", f"v_add_u32 v3, s{sT1}, v2",
          f"s_and_b32 s{sT2}, s{sW}, 2", f"s_lshl_b32 s{sT2}, s{sT2}, 11", f"v_add_u32 v5, s{sT2}, v3",
          f"s_xor_b32 s{sT2}, s{sT2}, 4096", f"v_add_u32 v3, s{sT2}, v3")
        a(f"ds_read_b128 {vr(vQ, 4)}, v5", f"ds_read_b128 {vr(vQ + 4, 4)}, v5 offset:2048",
          f"ds_read_b128 {vr(vQ + 8, 4)}, v3", f"ds_read_b128 {vr(vQ + 12, 4)}, v3 offset:2048")
        self.lds_spin(4, 5, L_CEX - L_MISC, 4)

    def attn_main(self):
        a = self.a
        a.label("L_attn")
        a.c("==== remaining 15 key tiles of this wave")
        a(f"s_lshl_b32 s{sT1}, s{sP}, 9", f"s_lshr_b32 s{sT2}, s{sW}, 1", f"s_lshl_b32 s{sT2}, s{sT2}, 7",
          f"s_add_u32 s{sT1}, s{sT1}, s{sT2}", f"s_add_u32 s{sT1}, s{sT1}, {WS_FKV}", "v_lshlrev_b32 v2, 3, v1")
        self.poll(16, 2, 4, sT1)
        self.stamp(7)
        a(*self.kv_loads(0))
        a(*self.kv_loads(1))
        a(f"s_mov_b32 s{sCNT}, 5", "s_waitcnt vmcnt(3)")
        self.mfma(vr(vS[0], 16), vr(vKB[0], 4), vr(vQ, 4), "0")
        a.nop(12)
        a.raw(".p2align 3")
        a.label("L_loop")
        for b in range(3):
            for qi in range(4):
                pend = (b, qi - 1) if qi else ((b - 1) % 3, 3)
                nxt = (b, qi + 1) if qi < 3 else ((b + 1) % 3, 0)
                extra = {}
                if qi == 0:
                    extra[3] = self.kv_loads((b + 2) % 3)
                if qi == 3:
                    extra[5] = ["s_waitcnt vmcnt(3)"]
                    if b == 2:
                        extra[12] = [f"s_sub_u32 s{sCNT}, s{sCNT}, 1", f"s_cmp_lg_u32 s{sCNT}, 0"]
                self.attn_tile(b, qi, pend, nxt, extra)
        a("s_cbranch_scc1 L_loop")
        a("s_nop 1")
        a(f"v_smfmac_f32_32x32x32_bf16 {ar(48, 16)}, {vr(vVB[2] + 4, 4)}, {vr(vS[1] + 8, 8)}, v{vIDX}")
        self.stamp(8)
        a(f"s_cmp_ge_u32 s{sW}, 4", "s_cbranch_scc1 L_bfinal")

    def dump_tile(self, vaddr, vaddr4, q, off):
        a = self.a
        a(f"ds_write_b128 v{vaddr}, {ar(16 * q, 4)} offset:{off}", f"ds_write_b128 v{vaddr}, {ar(16 * q + 4, 4)} offset:{off + 1024}",
          f"ds_write_b32 v{vaddr4}, {ar(16 * q + 8)} offset:{off + 2048}")

    def a_post(self):
        a = self.a
        vL16, vMI, vTR, vWO = 2, 4, 6, 7
        aB, aA = 16, 32
        sSTG, sWOC, sTILE = 11, 12, 13
        a.c("==== A waves: linear-attention output, output projection")
        a(f"v_mov_b32 v{vMI}, {L_MISC}", f"v_lshlrev_b32 v{vL16}, 4, v1")
        self.lds_spin(vMI, 5, L_CZ - L_MISC, 1)
        a(f"s_mul_i32 s{sT1}, s{sW}, {4 * PT}", f"s_add_u32 s{sT1}, s{sT1}, {L_AP}", f"v_add_u32 v8, s{sT1}, v{vL16}",
          "v_lshlrev_b32 v9, 2, v1", f"v_add_u32 v9, s{sT1}, v9")
        for q in range(4):
            self.dump_tile(8, 9, q, q * PT)
        self.tr_addr(vTR, 3, 8)
        a(f"s_lshl_b32 s{sSTG}, s{sW}, 14", f"v_add_u32 v{vTR}, s{sSTG}, v{vTR}",
          "v_lshrrev_b32 v3, 2, v1", "v_and_b32 v5, 3, v1", "v_lshlrev_b32 v3, 10, v3", f"v_lshl_add_u32 v{vWO}, v5, 4, v3",
          f"s_lshr_b32 s{sWOC}, s{sP}, 2", f"s_lshl_b32 s{sWOC}, s{sWOC}, 8", f"s_lshl_b32 s{sT1}, s{sW}, 6",
          f"s_add_u32 s{sWOC}, s{sWOC}, s{sT1}",
          f"s_and_b32 s{sTILE}, s{sP}, 3", f"s_lshl_b32 s{sT1}, s{sRB}, 2", f"s_add_u32 s{sTILE}, s{sTILE}, s{sT1}")

        def stage(srd, r):
            for n in range(16):
                self.dma(vWO, srd, sWOC, (256 * r + 16 * n) * 1024, sSTG, n * 1024)

        def unstage(r):
            for n in range(16):
                d = 64 * r + 4 * n
                a(f"ds_read_b64_tr_b16 {ar(d, 2)}, v{vTR} offset:{n * 1024}",
                  f"ds_read_b64_tr_b16 {ar(d + 2, 2)}, v{vTR} offset:{n * 1024 + 512}")
                if n % 4 == 3:
                    a("s_waitcnt lgkmcnt(4)")
            a("s_waitcnt lgkmcnt(0)")
        a("s_waitcnt vmcnt(0) lgkmcnt(0)")
        stage(S_WOB, 0)
        a.c("sum of the 16 (kv | z) partials: four per wave, then across the waves")
        a(f"s_lshl_b32 s{sT1}, s{sP}, 7", f"s_add_u32 s{sT1}, s{sT1}, {WS_FZ}", "v_lshlrev_b32 v3, 3, v1")
        self.poll(16, 3, 8, sT1)
        a(f"s_lshl_b32 s{sT1}, s{sP}, 16", f"s_lshl_b32 s{sT2}, s{sW}, 14", f"s_add_u32 s{sT1}, s{sT1}, s{sT2}",
          f"s_add_u32 s{sT1}, s{sT1}, {WS_KVZ}")
        for w in range(4):
            for q in range(4):
                a(f"buffer_load_dwordx4 {vr(48 + 16 * w + 4 * q, 4)}, v{vL16}, {sr(S_WS, 4)}, s{sT1} offen offset:{q * 1024} sc1")
            a(f"s_add_u32 s{sT1}, s{sT1}, 4096")
        unstage(0)
        stage(S_WOB, 1)
        a("s_waitcnt vmcnt(24)")
        for r in range(0, 16, 2):
            a(f"v_pk_add_f32 {vr(48 + r, 2)}, {vr(48 + r, 2)}, {vr(64 + r, 2)}")
        a("s_waitcnt vmcnt(16)")
        for r in range(0, 16, 2):
            a(f"v_pk_add_f32 {vr(80 + r, 2)}, {vr(80 + r, 2)}, {vr(96 + r, 2)}")
        for r in range(0, 16, 2):
            a(f"v_pk_add_f32 {vr(48 + r, 2)}, {vr(48 + r, 2)}, {vr(80 + r, 2)}")
        a(f"s_lshl_b32 s{sT1}, s{sW}, 12", f"s_add_u32 s{sT1}, s{sT1}, {L_KVX}", f"v_add_u32 v3, s{sT1}, v{vL16}")
        for q in range(4):
            a(f"ds_write_b128 v3, {vr(48 + 4 * q, 4)} offset:{q * 1024}")
        a("s_waitcnt lgkmcnt(0)")
        self.lds_inc(vMI, 5, L_CA - L_MISC)
        self.lds_spin(vMI, 5, L_CA - L_MISC, 4)
        a(f"v_add_u32 v3, {L_KVX}, v{vL16}")
        for w in range(3):
            for q in range(4):
                a(f"ds_read_b128 {vr(48 + 16 * w + 4 * q, 4)}, v3 offset:{w * 4096 + q * 1024}")
        a("s_waitcnt lgkmcnt(4)")
        for q in range(4):
            a(f"ds_read_b128 {vr(96 + 4 * q, 4)}, v3 offset:{3 * 4096 + q * 1024}")
        a(f"s_lshl_b32 s{sT1}, s{sW}, 11", f"s_add_u32 s{sT1}, s{sT1}, {L_PQ}", f"v_add_u32 v3, s{sT1}, v{vL16}",
          "ds_read_b128 v[112:115], v3", "ds_read_b128 v[116:119], v3 offset:1024")
        for r in range(0, 16, 2):
            a(f"v_pk_add_f32 {vr(48 + r, 2)}, {vr(48 + r, 2)}, {vr(64 + r, 2)}")
        a("s_waitcnt lgkmcnt(0)")
        for r in range(0, 16, 2):
            a(f"v_pk_add_f32 {vr(80 + r, 2)}, {vr(80 + r, 2)}, {vr(96 + r, 2)}")
        for r in range(0, 16, 2):
            a(f"v_pk_add_f32 {vr(48 + r, 2)}, {vr(48 + r, 2)}, {vr(80 + r, 2)}")
        for j in range(8):
            a(f"v_cvt_pk_bf16_f32 v{64 + j}, v{48 + 2 * j}, v{48 + 2 * j + 1}")
        a("s_nop 1")
        self.mfma(vr(80, 16), vr(64, 4), vr(112, 4), "0")
        self.mfma(vr(96, 16), vr(68, 4), vr(116, 4), "0")
        a(f"s_lshl_b32 s{sT1}, s{sRB}, 2", f"s_add_u32 s{sT1}, s{sT1}, s{sW}", f"s_lshl_b32 s{sT1}, s{sT1}, 5",
          f"s_lshl_b32 s{sT2}, s{sP}, 1", f"s_add_u32 s{sT1}, s{sT1}, s{sT2}",
          f"s_lshl_b32 s{sT2}, s{sT1}, 10", f"s_add_u32 s{sT2}, s{sT2}, {WS_OB}",
          f"s_lshl_b32 s{sT1}, s{sT1}, 3", f"s_add_u32 s{sT1}, s{sT1}, {WS_FOB}", f"s_mov_b32 s{sT3}, {f32(1e-6)}")
        a.nop(4)
        a(f"v_add_f32 v48, s{sT3}, v88", f"v_add_f32 v49, s{sT3}, v96", "v_rcp_f32 v48, v48", "v_rcp_f32 v49, v49", "s_nop 0")
        for r in range(8):
            a(f"v_mul_f32 v{80 + r}, v48, v{80 + r}", f"v_mul_f32 v{104 + r}, v49, v{104 + r}")
        for j in range(4):
            a(f"v_cvt_pk_bf16_f32 v{52 + j}, v{80 + 2 * j}, v{81 + 2 * j}")
        for j in range(4):
            a(f"v_cvt_pk_bf16_f32 v{56 + j}, v{104 + 2 * j}, v{105 + 2 * j}")
        a(f"buffer_store_dwordx4 v[52:55], v{vL16}, {sr(S_WS, 4)}, s{sT2} offen sc1",
          f"buffer_store_dwordx4 v[56:59], v{vL16}, {sr(S_WS, 4)}, s{sT2} offen offset:1024 sc1",
          "v_lshlrev_b32 v3, 3, v1", "s_waitcnt vmcnt(0)")
        self.flag(2, 3, 8, sT1)
        unstage(1)
        stage(S_WOA, 0)
        a.c("b = o_B Wo_B for the 32 x 32 tile of this wave")
        a(f"s_lshl_b32 s{sT1}, s{sTILE}, 8", f"s_add_u32 s{sT1}, s{sT1}, {WS_FOB}")
        self.poll(32, 3, 8, sT1)
        a(f"s_lshl_b32 s{sT4}, s{sTILE}, 15", f"s_add_u32 s{sT4}, s{sT4}, {WS_OB}")

        def obl(g):
            for n in range(8):
                if n == 4:
                    a(f"s_add_u32 s{sT4}, s{sT4}, 4096")
                a(f"buffer_load_dwordx4 {vr(48 + 32 * (g & 1) + 4 * n, 4)}, v{vL16}, {sr(S_WS, 4)}, s{sT4} offen offset:{(n & 3) * 1024} sc1")
            a(f"s_add_u32 s{sT4}, s{sT4}, 4096")

        def obm(g):
            for n in range(8):
                h = 8 * g + n
                self.mfma(vr(aB, 16), ar(4 * h, 4), vr(48 + 32 * (g & 1) + 4 * n, 4), "0" if h == 0 else vr(aB, 16))
        obl(0), obl(1)
        a("s_waitcnt vmcnt(8)")
        obm(0)
        obl(2)
        a("s_waitcnt vmcnt(8)")
        obm(1)
        obl(3)
        unstage(0)
        stage(S_WOA, 1)
        a("s_waitcnt vmcnt(24)")
        obm(2)
        a("s_waitcnt vmcnt(16)")
        obm(3)
        a("v_and_b32 v3, 31, v1", "v_lshlrev_b32 v3, 2, v3", f"v_add_u32 v3, {L_G}, v3", "ds_read_b32 v10, v3",
          "s_waitcnt vmcnt(0)")
        unstage(1)
        a.c("keep bf16(1 - g) * b")
        a("v_sub_f32 v11, 1.0, v10", "v_cvt_pk_bf16_f32 v11, v11, v11", "v_and_b32 v11, 0xffff0000, v11")
        for r in range(16):
            a(f"v_mul_f32 v{aB + r}, v11, v{aB + r}")
        a(f"s_lshl_b32 s{sT1}, s{sTILE}, 8", f"s_lshl_b32 s{sT2}, s{sW}, 6", f"s_add_u32 s{sT1}, s{sT1}, s{sT2}",
          f"s_add_u32 s{sT1}, s{sT1}, {WS_FOA}",
          f"s_lshl_b32 s{sT4}, s{sTILE}, 15", f"s_lshl_b32 s{sT2}, s{sW}, 13", f"s_add_u32 s{sT4}, s{sT4}, s{sT2}",
          f"s_add_u32 s{sT4}, s{sT4}, {WS_OA}", f"v_add_u32 v12, s{sT2}, v{vL16}", "v_lshlrev_b32 v3, 3, v1")
        self.stamp(6)
        a("s_barrier")
        self.poll(8, 3, 8, sT1)
        self.stamp(9)
        obl(0)
        a.c("output addresses")
        a("v_and_b32 v3, 31, v1", "v_lshlrev_b32 v3, 10, v3", "v_lshrrev_b32 v5, 5, v1", "v_lshl_add_u32 v3, v5, 4, v3",
          f"s_lshl_b32 s{sT1}, s{sTILE}, 15", f"s_add_u32 s{sT1}, s{sT1}, s{sWOC}")
        for n in range(8):
            a(f"s_waitcnt vmcnt({7 - n})", f"ds_write_b128 v12, {vr(48 + 4 * n, 4)} offset:{L_GA + n * 1024}")
        a("s_waitcnt lgkmcnt(0)", "s_barrier")

        def gr(h):
            a(f"ds_read_b128 {vr(48 + 4 * (h % 8), 4)}, v{vL16} offset:{L_GA + h * 1024}")
        for h in range(6):
            gr(h)
        for h in range(32):
            if h + 6 < 32:
                gr(h + 6)
            a(f"s_waitcnt lgkmcnt({min(6, 31 - h)})")
            self.mfma(vr(aA, 16), ar(4 * h, 4), vr(48 + 4 * (h % 8), 4), "0" if h == 0 else vr(aA, 16))
        noep = a.new("noepoch")
        a("s_or_b32 s14, s2, s%d" % sW, "s_cmp_lg_u32 s14, 0", f"s_cbranch_scc1 {noep}")
        a.c("every workgroup has read the epoch word by now: leave this launch's value for the next one")
        a("v_mov_b32 v5, 0", f"s_mov_b32 s14, {WS_EPOCH}")
        self.flag(1, 5, 8, 14)
        a.label(noep)
        a.nop(12)
        for r in range(16):
            a(f"v_fma_f32 v{aA + r}, v10, v{aA + r}, v{aB + r}")
        for j in range(8):
            a(f"v_cvt_pk_bf16_f32 v{48 + j}, v{aA + 2 * j}, v{aA + 2 * j + 1}")
        a("s_nop 1", "v_permlane32_swap_b32 v48, v50", "v_permlane32_swap_b32 v49, v51",
          "v_permlane32_swap_b32 v52, v54", "v_permlane32_swap_b32 v53, v55")
        a(f"buffer_store_dwordx4 v[48:51], v3, {sr(S_OUT, 4)}, s{sT1} offen",
          f"buffer_store_dwordx4 v[52:55], v3, {sr(S_OUT, 4)}, s{sT1} offen offset:32")
        self.dump_stamps()
        a("s_endpgm")

    def b_final(self):
        a = self.a
        F = (104, 113)
        a.label("L_bfinal")
        a.c("==== B waves: add the four partial results, normalise, publish")
        a(f"s_and_b32 s{sT1}, s{sW}, 3", f"s_mul_i32 s{sT2}, s{sT1}, {2 * PT}", f"s_add_u32 s{sT2}, s{sT2}, {L_BX}",
          "v_lshlrev_b32 v2, 4, v1", "v_lshlrev_b32 v3, 2, v1", f"v_add_u32 v4, s{sT2}, v2", f"v_add_u32 v5, s{sT2}, v3",
          f"s_xor_b32 s{sT1}, s{sT1}, 2", f"s_mul_i32 s{sT2}, s{sT1}, {2 * PT}", f"s_add_u32 s{sT2}, s{sT2}, {L_BX}",
          f"v_add_u32 v6, s{sT2}, v2", f"v_add_u32 v7, s{sT2}, v3")
        self.dump_tile(4, 5, 2, 0)
        self.dump_tile(4, 5, 3, PT)
        a.c("A partials: waves hh and hh+2, global tiles (w&2), (w&2)+1")
        a(f"s_mul_i32 s{sT2}, s{sHH}, {4 * PT}", f"s_and_b32 s{sT1}, s{sW}, 2", f"s_mul_i32 s{sT3}, s{sT1}, {PT}",
          f"s_add_u32 s{sT2}, s{sT2}, s{sT3}", f"s_add_u32 s{sT2}, s{sT2}, {L_AP}",
          f"v_add_u32 v8, s{sT2}, v2", f"v_add_u32 v9, s{sT2}, v3")
        for q in range(2):
            for r in range(9):
                a(f"v_accvgpr_read_b32 v{F[q] + r}, a{16 * q + r}")
        a(f"s_lshl_b32 s{sT2}, s{sRB}, 2", f"s_add_u32 s{sT1}, s{sT1}, s{sT2}", f"s_lshl_b32 s{sT1}, s{sT1}, 5",
          f"s_lshl_b32 s{sT2}, s{sP}, 1", f"s_add_u32 s{sT1}, s{sT1}, s{sT2}", f"s_add_u32 s{sT1}, s{sT1}, s{sHH}",
          f"s_lshl_b32 s{sT4}, s{sT1}, 10", f"s_add_u32 s{sT4}, s{sT4}, {WS_OA}",
          f"s_lshl_b32 s{sT5}, s{sT1}, 3", f"s_add_u32 s{sT5}, s{sT5}, {WS_FOA}")
        a("s_waitcnt vmcnt(0) lgkmcnt(0)", "s_barrier")
        srcs = [(6, 7, 0), (8, 9, 0), (8, 9, 8 * PT)]
        T = 32
        for n, (va, v4, off) in enumerate(srcs):
            for q in range(2):
                d = T + 24 * n + 12 * q
                a(f"ds_read_b128 {vr(d, 4)}, v{va} offset:{off + q * PT}", f"ds_read_b128 {vr(d + 4, 4)}, v{va} offset:{off + q * PT + 1024}",
                  f"ds_read_b32 v{d + 8}, v{v4} offset:{off + q * PT + 2048}")
            if n:
                self.addp(F, T + 24 * (n - 1), 6)
        self.addp(F, T + 48, 0)
        a.c("range check of the unshifted softmax: 2^-32 <= l <= 2^64 and finite sums, else redo with the true row max")
        a(f"s_mov_b32 s{sT1}, {f32(2.0 ** -32)}", f"s_mov_b32 s{sT2}, {f32(2.0 ** 64)}")
        for q in range(2):
            a(f"v_mul_f32 v{T + q}, 0, v{F[q]}")
            for r in range(1, 8):
                a(f"v_fma_f32 v{T + q}, 0, v{F[q] + r}, v{T + q}")
            a(f"v_add_f32 v{T + q}, v{T + q}, v{F[q] + 8}")
        a(f"s_mov_b64 {sr(sSAV, 2)}, 0")
        for q in range(2):
            a(f"v_cmp_nle_f32 vcc, s{sT1}, v{T + q}", f"s_or_b64 {sr(sSAV, 2)}, {sr(sSAV, 2)}, vcc",
              f"v_cmp_nge_f32 vcc, s{sT2}, v{T + q}", f"s_or_b64 {sr(sSAV, 2)}, {sr(sSAV, 2)}, vcc")
        if self.o.get("force_slow"):
            a(f"s_mov_b64 {sr(sSAV, 2)}, -1")
        a(f"s_cmp_lg_u64 {sr(sSAV, 2)}, 0", "s_cbranch_scc1 L_slow")
        a.label("L_norm")
        a(f"v_rcp_f32 v{T}, v{F[0] + 8}", f"v_rcp_f32 v{T + 1}, v{F[1] + 8}", "s_nop 0")
        for q in range(2):
            for r in range(8):
                a(f"v_mul_f32 v{F[q] + r}, v{T + q}, v{F[q] + r}")
            for j in range(4):
                a(f"v_cvt_pk_bf16_f32 v{T + 4 + 4 * q + j}, v{F[q] + 2 * j}, v{F[q] + 2 * j + 1}")
            a(f"buffer_store_dwordx4 {vr(T + 4 + 4 * q, 4)}, v2, {sr(S_WS, 4)}, s{sT4} offen sc1")
            if q == 0:
                a(f"s_add_u32 s{sT4}, s{sT4}, 32768")
        a("v_lshlrev_b32 v3, 8, v1", "s_waitcnt vmcnt(0)")
        self.flag(2, 3, 6, sT5)
        self.stamp(9)
        self.dump_stamps()
        a("s_endpgm")
        self.slow_path(F)

    def addp(self, F, t, cnt):
        a = self.a
        a(f"s_waitcnt lgkmcnt({cnt})")
        for q in range(2):
            for r in range(9):
                a(f"v_add_f32 v{F[q] + r}, v{F[q] + r}, v{t + 12 * q + r}")

    def slow_path(self, F):
        a = self.a
        S, ACC, M = vS[0], vS[1], 103
        a.label("L_slow")
        a(f"s_lshl_b32 s{sT1}, s{sP}, 18", f"s_lshl_b32 s{sT2}, s{sHH}, 17", f"s_add_u32 s{sT1}, s{sT1}, s{sT2}",
          f"s_add_u32 s{sT1}, s{sT1}, {WS_KV}", f"v_add_u32 v{vAK}, s{sT1}, v2", f"v_add_u32 v{vAV}, s{sT1}, v15")
        a(f"v_mov_b32 v{vIDX}, 0xdddddddd")
        for r in range(8):
            a(f"v_mov_b32 v{vVB[0] + r}, {hex(ONES)}")
        for q in range(2):
            l1, l2 = a.new("max"), a.new("sum")
            a(f"v_mov_b32 v{M}, 0xff800000", f"s_mov_b32 s{sROT}, 0")
            a.label(l1)
            a(f"buffer_load_dwordx4 {vr(vKB[0], 4)}, v{vAK}, {sr(S_WS, 4)}, s{sROT} offen sc1", "s_waitcnt vmcnt(0)")
            self.mfma(vr(S, 16), vr(vKB[0], 4), vr(vQ + 4 * q, 4), "0")
            a.nop(12)
            for r in range(0, 16, 2):
                a(f"v_max3_f32 v{M}, v{S + r}, v{S + r + 1}, v{M}")
            a(f"s_add_u32 s{sROT}, s{sROT}, 2048", f"s_cmp_lt_u32 s{sROT}, {64 * 2048}", f"s_cbranch_scc1 {l1}")
            a(f"v_mov_b32 v{S}, v{M}", "s_nop 1", f"v_permlane32_swap_b32 v{S}, v{M}", "s_nop 1", f"v_max_f32 v{M}, v{S}, v{M}")
            for r in range(16):
                a(f"v_mov_b32 v{ACC + r}, 0")
            a(f"s_mov_b32 s{sROT}, 0")
            a.label(l2)
            a(*self.kv_loads(0)[:5])
            a("s_waitcnt vmcnt(0)")
            self.mfma(vr(S, 16), vr(vKB[0], 4), vr(vQ + 4 * q, 4), "0")
            a.nop(12)
            for r in range(16):
                a(f"v_sub_f32 v{S + r}, v{S + r}, v{M}")
            for r in range(16):
                a(f"v_exp_f32 v{S + r}, v{S + r}")
            a("s_nop 1")
            a(f"v_smfmac_f32_32x32x32_bf16 {vr(ACC, 16)}, {vr(vVB[0], 4)}, {vr(S, 8)}, v{vIDX}",
              f"v_smfmac_f32_32x32x32_bf16 {vr(ACC, 16)}, {vr(vVB[0] + 4, 4)}, {vr(S + 8, 8)}, v{vIDX}")
            a(f"s_add_u32 s{sROT}, s{sROT}, 2048", f"s_cmp_lt_u32 s{sROT}, {64 * 2048}", f"s_cbranch_scc1 {l2}")
            a.nop(12)
            for r in range(9):
                a(f"v_mov_b32 v{F[q] + r}, v{ACC + r}")
        a("s_branch L_norm")


HEADER = """; Kernarg layout for this problem (80 bytes, ptrs only, base s[0:1]):
; @launch grid=(256,1,1) block=(512,1,1) lds=%d
.amdgcn_target "amdgcn-amd-amdhsa--gfx950"
.text
.globl %s_kernel
.p2align 8
.type %s_kernel,@function
%s_kernel:
"""
FOOTER = """.section .rodata,"a"
.p2align 6
.amdhsa_kernel %s_kernel
  .amdhsa_next_free_vgpr 256
  .amdhsa_next_free_sgpr 102
  .amdhsa_accum_offset 128
  .amdhsa_group_segment_fixed_size 0
  .amdhsa_kernarg_size 80
  .amdhsa_user_sgpr_count 2
  .amdhsa_user_sgpr_kernarg_segment_ptr 1
  .amdhsa_system_sgpr_workgroup_id_x 1
.end_amdhsa_kernel
"""


def generate(opt):
    body = Gen(opt).build()
    bad = check(body)
    if bad:
        print("\n".join(bad[:40]))
        raise SystemExit(f"{len(bad)} wait-state findings")
    return HEADER % (LDS_BYTES, NAME, NAME, NAME) + body + FOOTER % NAME


if __name__ == "__main__":
    opt = {}
    out = f"cdna_kernels/{NAME}.s"
    for x in sys.argv[1:]:
        if x.startswith("-o"):
            out = x[2:]
        else:
            k, _, v = x.partition("=")
            opt[k] = int(v) if v else 1
    open(out, "w").write(generate(opt))
    print("wrote", out)
```

```python
import sys
from hostlib import *
def kern(name, look, rot, warm, pace=0, first=0):
    L=[]; A=L.append
    A("s_memtime s[40:41]")
    A("s_load_dwordx4 s[4:7], s[0:1], 0")
    A("s_load_dwordx4 s[8:11], s[0:1], 16")
    A("s_and_b32 s22, s2, 7"); A("s_lshr_b32 s23, s2, 3")
    A("s_and_b32 s20, s22, 1"); A("s_lshl_b32 s20, s20, 3"); A("s_and_b32 s24, s23, 7"); A("s_add_u32 s20, s20, s24")
    A("s_lshr_b32 s21, s22, 1"); A("s_lshl_b32 s21, s21, 2"); A("s_lshr_b32 s26, s23, 3"); A("s_add_u32 s21, s21, s26")
    A("v_lshrrev_b32 v1, 6, v0"); A("v_and_b32 v2, 63, v0"); A("v_readfirstlane_b32 s25, v1")
    A("v_lshrrev_b32 v3, 3, v2"); A("v_and_b32 v4, 7, v2"); A("v_lshrrev_b32 v5, 1, v3"); A("v_xor_b32 v4, v4, v5")
    A("v_lshlrev_b32 v3, 10, v3"); A("v_lshl_add_u32 v3, v4, 4, v3")
    A("v_lshrrev_b32 v6, 2, v2"); A("v_and_b32 v7, 3, v2"); A("v_mul_u32_u24 v6, 3072, v6"); A("v_lshl_add_u32 v6, v7, 4, v6")
    if rot=="latin": A("s_lshl_b32 s30, s21, 1"); A("s_add_u32 s30, s30, s20"); A("s_and_b32 s30, s30, 7")
    elif rot=="half": A("s_and_b32 s30, s20, 1"); A("s_lshl_b32 s30, s30, 2")
    elif rot=="quart": A("s_lshr_b32 s30, s21, 0"); A("s_add_u32 s30, s30, s20"); A("s_and_b32 s30, s30, 3"); A("s_lshl_b32 s30, s30, 1")
    else: A("s_mov_b32 s30, 0")
    A("s_and_b32 s27, s25, 3")
    A("s_waitcnt lgkmcnt(0)")
    for i,(b,sz) in enumerate(((6,2097152),(8,1572864))):
        r=48+4*i
        A(f"s_mov_b32 s{r}, s{b}"); A(f"s_mov_b32 s{r+1}, s{b+1}"); A(f"s_mov_b32 s{r+2}, {sz}"); A(f"s_mov_b32 s{r+3}, 0x20000")
    A("s_cmp_ge_u32 s25, 4"); A(f"s_cbranch_scc1 L_{name}_b")
    if warm:
        A("s_lshr_b32 s31, s22, 1"); A("s_lshl_b32 s31, s31, 19"); A("s_lshl_b32 s32, s23, 14"); A("s_add_u32 s31, s31, s32")
        A("s_lshl_b32 s32, s25, 8"); A("s_add_u32 s31, s31, s32")
        A("v_and_b32 v8, 15, v2"); A("v_bfe_u32 v9, v2, 4, 1"); A("v_lshlrev_b32 v8, 10, v8"); A("v_lshl_add_u32 v8, v9, 7, v8")
        A("s_mul_i32 s33, s25, 128*3072"); A("s_mul_i32 s32, s23, 2*3072"); A("s_add_u32 s33, s33, s32"); A("s_and_b32 s32, s22, 1"); A("s_lshl_b32 s32, s32, 9"); A("s_add_u32 s33, s33, s32"); A("s_add_u32 s33, s33, 1024")
        A("v_and_b32 v10, 1, v2"); A("v_lshl_add_u32 v10, v9, 6, v10"); A("v_mul_u32_u24 v10, 3072, v10")
        A("v_bfe_u32 v11, v2, 1, 1"); A("v_lshl_add_u32 v10, v11, 10, v10"); A("v_bfe_u32 v11, v2, 2, 2"); A("v_lshl_add_u32 v10, v11, 7, v10")
        if first:
            A(f"s_cmp_lt_u32 s25, {first}"); A(f"s_cbranch_scc1 L_{name}_nw")
        if pace:
            A("s_mov_b32 s32, s25")
            A(f"L_{name}_p:"); A(f"s_cmp_le_u32 s32, {first}"); A(f"s_cbranch_scc1 L_{name}_pd"); A(f"s_sleep {pace}"); A("s_sub_u32 s32, s32, 1"); A(f"s_branch L_{name}_p"); A(f"L_{name}_pd:")
        A("s_mov_b32 exec_hi, 0")
        A("buffer_load_dword v12, v8, s[48:51], s31 offen")
        A("buffer_load_dword v13, v10, s[52:55], s33 offen")
        A("s_mov_b64 exec, -1")
        A(f"L_{name}_nw:")
    for i in range(8): A("s_barrier")
    A(f"s_branch L_{name}_end")
    A(f"L_{name}_b:")
    A("s_lshl_b32 s34, s21, 17"); A("s_lshl_b32 s35, s27, 15"); A("s_add_u32 s34, s34, s35")
    A("s_mul_i32 s36, s27, 16*3072"); A("s_lshl_b32 s35, s20, 6"); A("s_add_u32 s36, s36, s35")
    A("s_lshl_b32 s37, s27, 12"); A("s_lshl_b32 s38, s27, 10")
    n=[0]
    def job(i):
        A(f"s_add_u32 s31, s30, {i}"); A("s_and_b32 s31, s31, 7"); A("s_mul_i32 s32, s31, 64*3072"); A("s_add_u32 s32, s32, s36"); A("s_lshl_b32 s31, s31, 7"); A("s_add_u32 s31, s31, s34")
        base=(i%4)*24576
        for g in range(4):
            A(f"s_add_u32 m0, s37, {base+g*1024}"); A(f"s_add_u32 s33, s31, {g*8192}"); A("buffer_load_dwordx4 v3, s[48:51], s33 offen lds")
        for t in range(2):
            A(f"s_add_u32 m0, s38, {base+16384+t*4096}"); A(f"s_add_u32 s33, s32, {1024*(t+1)}"); A("buffer_load_dwordx4 v6, s[52:55], s33 offen lds")
        n[0]+=6
    for i in range(look): job(i)
    for i in range(8):
        A(f"s_waitcnt vmcnt({n[0]-6*(i+1)})"); A("s_barrier"); A(f"s_memtime s[{60+2*i}:{61+2*i}]")
        if i+look<8: job(i+look)
    A("s_waitcnt lgkmcnt(0)")
    for i in range(8):
        A(f"s_sub_u32 s{60+2*i}, s{60+2*i}, s40"); A(f"v_mov_b32 v{16+i}, s{60+2*i}")
    A("s_lshl_b32 s31, s2, 3"); A("v_add_u32 v1, s31, v1"); A("v_lshlrev_b32 v1, 5, v1")
    A("global_store_dwordx4 v1, v[16:19], s[4:5]"); A("global_store_dwordx4 v1, v[20:23], s[4:5] offset:16")
    A(f"L_{name}_end:")
    A("s_waitcnt vmcnt(0)"); A("s_endpgm")
    return dict(name=name, text="\n".join("    "+x if not x.endswith(":") else x for x in L), vgpr=32)
K=[]
for look in (2,3):
    for rot in ("latin","quart","half","none"):
        K.append(kern(f"s_l{look}_{rot}",look,rot,0))
    for pace in (0,4,8,12):
        for first in (0,1):
            K.append(kern(f"s_l{look}_none_w_p{pace}_f{first}",look,"none",1,pace,first))
assemble(wrap(K,4),"dma7")
if len(sys.argv)>1:
    import cdna_launch as cl
    rs=np.random.RandomState(0)
    x=cl.DeviceBuffer.from_numpy(rs.randint(0,65535,2048*512).astype(np.uint16))
    wa=cl.DeviceBuffer.from_numpy(rs.randint(0,65535,512*1536).astype(np.uint16))
    out=cl.DeviceBuffer(256*8*32)
    big=cl.DeviceBuffer(512<<20)
    ka=struct.pack("<4Q",out.ptr,x.ptr,wa.ptr,0)
    np.set_printoptions(linewidth=250)
    for k in K:
        ak=cl.AsmKernel("dma7.co",k["name"])
        for cold in (512,48):
            res=[];mx=[]
            for rep in range(7):
                cl._check(cl._hip.hipMemset(big._ptr, rep, cold<<20)); cl._check(cl._hip.hipDeviceSynchronize())
                ak.launch((256,1,1),(512,1,1),ka,163840)
                cl._check(cl._hip.hipDeviceSynchronize())
                r=out.to_numpy(np.uint32,(256,8,8)).astype(np.int64)[:,4]
                res.append(np.median(r,axis=0)); mx.append(r[:,7].max())
            print(f"{k['name']:24s} flushMB={cold}", np.median(np.array(res),axis=0).astype(int), "max_last", int(np.median(mx)))
        ak.unload()
```

```python
import sys
from mblib import *
Q=16; S=[32,48]; KB=[64,68,72]; VB=[76,84,92]; IDX=100; AK=101; AV=102
def vr(b,n): return f"v[{b}:{b+n-1}]"
def ar(b,n): return f"a[{b}:{b+n-1}]"
def body(loads=True, p_smf1=2, p_qk=5, p_smf0=10, flags="sc1", nq=4, loadpos=(3,), masked=True, kind="buf", spread=False, salu=True):
    L=[]
    for b in range(3):
        for qi in range(nq):
            n=b*nq+qi
            cur=S[n&1]; oth=S[(n+1)&1]
            pb,pq=(b,qi-1) if qi else ((b-1)%3,nq-1)
            nb,nqi=(b,qi+1) if qi<nq-1 else ((b+1)%3,0)
            for e in range(16):
                if e==p_smf1:
                    L.append(f"v_smfmac_f32_32x32x32_bf16 {ar(16*pq,16)}, {vr(VB[pb]+4,4)}, {vr(oth+8,8)}, v{IDX}")
                if e==p_qk:
                    if qi==nq-1 and loads: L.append("s_waitcnt vmcnt(3)")
                    L.append(f"v_mfma_f32_32x32x16_bf16 {vr(oth,16)}, {vr(KB[nb],4)}, {vr(Q+4*nqi,4)}, 0")
                if e==p_smf0:
                    L.append(f"v_smfmac_f32_32x32x32_bf16 {ar(16*qi,16)}, {vr(VB[b],4)}, {vr(cur,8)}, v{IDX}")
                lb=(b+2)%3
                if kind=="buf":
                    ld=[f"buffer_load_dwordx4 {vr(KB[lb],4)}, v{AK}, s[16:19], s22 offen {flags}", f"buffer_load_dwordx4 {vr(VB[lb],4)}, v{AV}, s[16:19], s22 offen offset:1024 {flags}", f"buffer_load_dwordx4 {vr(VB[lb]+4,4)}, v{AV}, s[16:19], s22 offen offset:1536 {flags}"]
                elif kind=="glb":
                    ld=[f"global_load_dwordx4 {vr(KB[lb],4)}, v{AK}, s[12:13] {flags}", f"global_load_dwordx4 {vr(VB[lb],4)}, v{AV}, s[12:13] offset:1024 {flags}", f"global_load_dwordx4 {vr(VB[lb]+4,4)}, v{AV}, s[12:13] offset:1536 {flags}"]
                elif kind=="none": ld=[]
                seq=ld[:1]+(["s_mov_b64 exec, s[24:25]"] if masked else [])+ld[1:]+(["s_mov_b64 exec, -1"] if masked else [])+(["s_add_u32 s22, s22, 8192","s_and_b32 s22, s22, 0x1ffff"] if salu else [])
                if loads and not spread and qi==0 and e==loadpos[0]: L.extend(seq)
                if loads and spread:
                    if qi==0 and e==3: L.extend(ld[:1])
                    if qi==1 and e==12: L.extend((["s_mov_b64 exec, s[24:25]"] if masked else [])+ld[1:]+(["s_mov_b64 exec, -1"] if masked else []))
                    if qi==2 and e==12 and salu: L.extend(["s_add_u32 s22, s22, 8192","s_and_b32 s22, s22, 0x1ffff"])
                L.append(f"v_exp_f32 v{cur+e}, v{cur+e}")
    return "\n".join("    "+x for x in L)
init="\n".join(f"    v_mov_b32 v{i}, 0" for i in range(8,128))+"\n"+"\n".join(f"    v_accvgpr_write_b32 a{i}, 0" for i in range(64))
init+=f"""
    v_mov_b32 v{IDX}, 0xdddddddd
    v_and_b32 v3, 63, v1
    v_lshlrev_b32 v{AK}, 4, v3
    v_and_b32 v4, 15, v3
    v_lshrrev_b32 v5, 5, v3
    v_lshl_add_u32 v4, v5, 4, v4
    v_lshlrev_b32 v{AV}, 4, v4
    v_lshrrev_b32 v5, 6, v1
    v_and_b32 v5, 3, v5
    v_lshlrev_b32 v5, 11, v5
    v_add_u32 v{AK}, v5, v{AK}
    v_add_u32 v{AV}, v5, v{AV}
    s_and_b32 s23, s2, 31
    s_lshl_b32 s23, s23, 17
    v_add_u32 v{AK}, s23, v{AK}
    v_add_u32 v{AV}, s23, v{AV}
    s_mov_b32 s22, 0
    s_mov_b32 s24, 0x0000ffff
    s_mov_b32 s25, 0x0000ffff
"""
K=[]
def add(name,b,div=12):
    K.append(dict(name=name, body=b, nloop=100, init=init, vgprs=128, agpr=64, div=div, blocks=[256,512]))
add("noload", body(False))
add("buf", body(True))
add("glb", body(True,kind="glb"))
add("buf_nomask_nosalu", body(True,masked=False,salu=False))
add("glb_nomask_nosalu", body(True,kind="glb",masked=False,salu=False))
add("none_mask_salu", body(True,kind="none"))
add("buf_spread", body(True,spread=True))
add("buf_p11", body(True,loadpos=(11,)))
add("buf_p6", body(True,loadpos=(6,)))
if __name__=="__main__":
    build("mb4", K)
    if len(sys.argv)>1: run("mb4", K)
```
